```python
import torch

def _softmax(x, axis=-1):
    return torch.softmax(x, dim=axis)
def _gelu(x):
    return torch.nn.functional.gelu(x, approximate="tanh")
def _silu(x):
    return torch.nn.functional.silu(x)
def _sigmoid(x):
    return torch.sigmoid(x)
def _layernorm(x, axis=-1, eps=1e-5):
    m = x.mean(dim=axis, keepdim=True)
    v = x.var(dim=axis, keepdim=True, unbiased=False)
    return (x - m) / torch.sqrt(v + eps)
def _scatter_add(tgt, idx, src, axis=0):
    return tgt.clone().index_add_(axis, idx, src)
def _segment_sum(src, seg, n):
    out = torch.zeros((n,) + src.shape[1:], dtype=src.dtype)
    return out.index_add_(0, seg, src)
def _pad(x, pw):
    flat = tuple(v for pair in reversed(pw) for v in pair)
    return torch.nn.functional.pad(x, flat)

kernel_name = 'recurrent_scan__spectral_gfnet__glu_gated_glu__prompt'

def setup_inputs():

    _w = (lambda a: (lambda t: t.to(torch.bfloat16) if t.is_floating_point() else t)(torch.as_tensor(a)))
    def _A_setup():
        B, S, D = 1, 2048, 512
        Df = D // 2 + 1
        return {
            "x": _w((lambda *s: torch.randn(*s, dtype=torch.bfloat16) * 0.05)(B, S, D)),
            "w_r": _w((lambda *s: torch.randn(*s, dtype=torch.bfloat16) * 0.05)(S, Df) * 0.02),
            "w_i": _w((lambda *s: torch.randn(*s, dtype=torch.bfloat16) * 0.05)(S, Df) * 0.02),
        }
    _A_in = _A_setup()

    def _B_setup():
        B, S, D, F = 1, 2048, 512, 1792
        return {
            "x": _w((lambda *s: torch.randn(*s, dtype=torch.bfloat16) * 0.05)(B, S, D)),
            "w_gate": _w((lambda *s: torch.randn(*s, dtype=torch.bfloat16) * 1.6)(D, F)),
            "w_up": _w((lambda *s: torch.randn(*s, dtype=torch.bfloat16) * 0.1)(D, F)),
            "w_down": _w((lambda *s: torch.randn(*s, dtype=torch.bfloat16) * 0.1)(F, D)),
        }
    _B_in = _B_setup()

    return {
        "A_x": _A_in["x"],
        "A_w_r": _A_in["w_r"],
        "A_w_i": _A_in["w_i"],
        "B_x": _B_in["x"],
        "B_w_gate": _B_in["w_gate"],
        "B_w_up": _B_in["w_up"],
        "B_w_down": _B_in["w_down"],
    }

def reference(A_x, A_w_r, A_w_i, B_x, B_w_gate, B_w_up, B_w_down):
    def _A_ref(x, w_r, w_i):
        B, S, D = x.shape
        X = (lambda x, axes=(-2,-1): torch.fft.rfft2(x.float(), dim=axes))(x, axes=(-2, -1))
        W = w_r + 1j * w_i
        X = X * W
        y = (lambda x, s, axes=(-2,-1): torch.fft.irfft2(x, s=s, dim=axes).to(torch.bfloat16))(X, (S, D), axes=(-2, -1))
        return y

    def _B_ref(x, w_gate, w_up, w_down):
        g = torch.einsum("bsd,df->bsf", x, w_gate)
        u = torch.einsum("bsd,df->bsf", x, w_up)
        h = _sigmoid(g) * u
        return torch.einsum("bsf,fd->bsd", h, w_down)

    x = A_x
    xn = _layernorm(x, axis=-1)
    s = _A_ref(xn, A_w_r, A_w_i)
    g = _silu(_B_ref(xn, B_w_gate, B_w_up, B_w_down))
    return x + s * g
```

```python
import re

def v(a, n=1):
    return f"v{a}" if n == 1 else f"v[{a}:{a+n-1}]"
def a_(a, n=1):
    return f"a{a}" if n == 1 else f"a[{a}:{a+n-1}]"
def s(a, n=1):
    return f"s{a}" if n == 1 else f"s[{a}:{a+n-1}]"

_REG = re.compile(r'^(-|\|)?(abs\()?([vsa])(\d+|\[(\d+):(\d+)\])\)?\|?$')
def regs_of(op):
    op = op.strip()
    if op in ('vcc',): return {('s', 'vcc')}
    if op in ('vcc_lo', 'vcc_hi'): return {('s', 'vcc')}
    if op == 'exec' or op.startswith('exec_'): return {('s', 'exec')}
    if op == 'm0': return {('s', 'm0')}
    m = _REG.match(op)
    if not m: return set()
    k = m.group(3)
    if m.group(5) is not None:
        return {(k, i) for i in range(int(m.group(5)), int(m.group(6)) + 1)}
    return {(k, int(m.group(4)))}

TRANS = ('v_exp_f32', 'v_log_f32', 'v_rcp_f32', 'v_rsq_f32', 'v_sqrt_f32', 'v_sin_f32', 'v_cos_f32', 'v_rcp_iflag_f32')

class Ins:
    def __init__(self, text):
        self.text = text
        t = text.split(';')[0].strip()
        self.is_label = t.endswith(':')
        self.is_dir = t.startswith('.') and not self.is_label
        self.mn = ''
        self.w = set(); self.r = set()
        self.kind = 'other'
        self.srcC = set(); self.srcAB = set(); self.passes = 0
        self.dpp = False; self.data = set(); self.wide_store = False
        if self.is_label or self.is_dir or not t:
            self.kind = 'none'; return
        parts = t.split(None, 1)
        mn = parts[0]; self.mn = mn
        rest = parts[1] if len(parts) > 1 else ''
        ops = []; cur = ''; depth = 0
        for ch in rest:
            if ch in '[(': depth += 1
            if ch in '])': depth -= 1
            if ch == ',' and depth == 0: ops.append(cur.strip()); cur = ''
            else: cur += ch
        if cur.strip(): ops.append(cur.strip())
        mods = ''
        if ops:
            sp = ops[-1].split(None, 1)
            ops[-1] = sp[0]
            if len(sp) > 1: mods = sp[1]
        self.ops = ops; self.mods = mods
        R = [regs_of(o) for o in ops]
        allr = set().union(*R) if R else set()
        if mn.startswith('v_mfma'):
            self.kind = 'mfma'
            self.w = R[0]; self.srcAB = R[1] | R[2]; self.srcC = R[3]; self.r = self.srcAB | self.srcC
            self.passes = 8 if '32x32x16' in mn else 4 if '16x16x32' in mn else 2 if '4x4x4' in mn else 16
        elif mn.startswith('v_'):
            self.kind = 'valu'
            self.dpp = ('quad_perm' in mods or 'row_' in mods or 'wave_' in mods or '_dpp' in mn)
            if mn.startswith('v_cmp'):
                self.w = R[0]; self.r = set().union(*R[1:])
                if mn.startswith('v_cmpx'): self.w = self.w | {('s', 'exec')}
            elif mn.startswith(('v_add_co', 'v_sub_co', 'v_subrev_co', 'v_addc_co', 'v_subb_co', 'v_div_scale', 'v_mad_u64')):
                self.w = R[0] | R[1]; self.r = set().union(*R[2:])
            elif mn.startswith('v_permlane') and 'swap' in mn:
                self.w = R[0] | R[1]; self.r = R[0] | R[1]
            elif mn == 'v_nop':
                pass
            else:
                self.w = R[0]; self.r = set().union(*R[1:]) if len(R) > 1 else set()
                if mn.startswith(('v_fmac', 'v_dot2c', 'v_writelane', 'v_pk_fmac')) or self.dpp or 'sdwa' in mn:
                    self.r = self.r | R[0]
                if mn.startswith('v_cndmask') and len(ops) == 3: self.r |= {('s', 'vcc')}
        elif mn.startswith(('buffer_', 'global_', 'flat_')):
            self.kind = 'vmem'
            lds = (' lds' in ' ' + mods) or ('_lds_' in mn)
            if mn in ('buffer_wbl2', 'buffer_inv'):
                pass
            elif 'load' in mn and not lds:
                self.w = R[0]; self.r = set().union(*R[1:])
                if 'd16' in mn: self.r |= R[0]
            elif 'atomic' in mn and 'sc0' in mods:
                if mn.startswith('buffer'):
                    self.w = R[0]; self.r = allr
                else:
                    self.w = R[0]; self.r = set().union(*R[1:])
            else:
                self.r = allr
                if lds: self.r = self.r | {('s', 'm0')}
                if 'store' in mn and ('x3' in mn or 'x4' in mn):
                    self.wide_store = True
                    self.data = R[0] if mn.startswith('buffer') else R[1]
            self.lds = lds
        elif mn.startswith('ds_'):
            self.kind = 'ds'
            if 'read' in mn or 'permute' in mn or 'swizzle' in mn or '_rtn' in mn:
                self.w = R[0]; self.r = set().union(*R[1:]) if len(R) > 1 else set()
                if 'd16' in mn: self.r |= R[0]
            else:
                self.r = allr
        elif mn.startswith('s_'):
            self.kind = 'salu'
            if mn.startswith(('s_cmp', 's_cbranch', 's_branch', 's_waitcnt', 's_barrier', 's_nop', 's_endpgm', 's_setprio', 's_sleep', 's_bitcmp', 's_sendmsg')):
                self.r = allr
            else:
                self.w = R[0] if R else set(); self.r = set().union(*R[1:]) if len(R) > 1 else set()
                if 'saveexec' in mn: self.w = self.w | {('s', 'exec')}
        self.states = 1
        if mn == 's_nop': self.states = int(ops[0], 0) + 1

def need(p, c):
    n = 0
    pw_v = {x for x in p.w if x[0] in 'va'}
    pw_s = {x for x in p.w if x[0] == 's'}
    if p.kind == 'valu':
        isdot = p.mn.startswith('v_dot')
        if c.kind == 'mfma' and pw_v & c.r: n = max(n, 3 if isdot else 2)
        if c.kind == 'valu':
            if c.dpp and pw_v & c.r: n = max(n, 2)
            if c.mn.startswith('v_permlane') and pw_v & c.r: n = max(n, 2)
            if c.mn.startswith(('v_readlane', 'v_readfirstlane')) and pw_v & c.r: n = max(n, 1)
            if p.mn.replace('_e32', '').replace('_e64', '') in TRANS and pw_v & c.r: n = max(n, 1)
            if pw_s & c.r: n = max(n, 4 if c.mn.startswith(('v_readlane', 'v_writelane', 'v_div_fmas')) else 2)
            if ('s', 'exec') in p.w: n = max(n, 5 if c.dpp else 4)
            if ('op_sel' in p.mods or 'sdwa' in p.mn) and not p.mn.startswith('v_pk_') and pw_v & (c.r | c.w): n = max(n, 1)
            if isdot and pw_v & (c.r | c.w):
                same = c.mn == p.mn
                if same:
                    ab = set()
                    if c.mn.startswith('v_dot2c'): ab = regs_of(c.ops[1]) | regs_of(c.ops[2])
                    else: ab = regs_of(c.ops[1]) | regs_of(c.ops[2])
                    if pw_v & ab: n = max(n, 3)
                else: n = max(n, 3)
        if c.kind in ('vmem',) and pw_s & c.r: n = max(n, 5)
        if c.kind in ('vmem', 'ds') and isdot and pw_v & c.r: n = max(n, 3)
        if c.kind == 'mfma' and ('s', 'exec') in p.w: n = max(n, 4)
        if c.kind == 'salu' and pw_s & c.r: n = max(n, 1)
    if p.kind == 'mfma':
        P = p.passes
        tab_use = {2: 5, 4: 8, 8: 12, 16: 20}[P]
        tab_ovl = {2: 4, 4: 6, 8: 10, 16: 18}[P]
        if c.kind == 'mfma':
            if p.w & c.srcAB: n = max(n, tab_use)
            if p.w & c.srcC:
                if p.w == c.srcC and p.passes == c.passes: n = max(n, 2 if P == 2 else 0)
                else: n = max(n, tab_ovl)
            elif p.w & c.w: n = max(n, tab_ovl)
        elif c.kind in ('valu', 'vmem', 'ds'):
            if p.w & (c.r | c.w): n = max(n, tab_use)
            if c.kind == 'valu' and p.srcC & c.w: n = max(n, {2: 1, 4: 3, 8: 7, 16: 15}[P])
    if p.kind == 'salu':
        if ('s', 'm0') in p.w and c.kind == 'vmem' and ('s', 'm0') in c.r: n = max(n, 1)
    if p.kind == 'vmem' and p.wide_store and p.data & c.w:
        n = max(n, 2 if c.kind in ('valu', 'mfma') else 1)
    return n

def pad(lines, verbose=False):
    out = []; hist = []
    npad = 0
    for t in lines:
        c = Ins(t)
        if c.kind == 'none':
            out.append(t); continue
        req = 0; dist = 0
        for p in reversed(hist):
            k = need(p, c)
            if k > dist: req = max(req, k - dist)
            dist += p.states
            if dist >= 20: break
        while req > 0:
            k = min(req, 16)
            nop = f"    s_nop {k-1}"
            out.append(nop); hist.append(Ins(nop)); req -= k; npad += 1
        out.append(t); hist.append(c)
        if len(hist) > 40: hist = hist[-30:]
    return out

def check_loops(lines):
    labels = {}
    ins = [Ins(t) for t in lines]
    for i, c in enumerate(ins):
        if c.is_label: labels[c.text.split(';')[0].strip()[:-1]] = i
    for i, c in enumerate(ins):
        if c.mn.startswith(('s_cbranch', 's_branch')):
            tgt = labels.get(c.ops[0])
            if tgt is None: continue
            tail = [x for x in ins[max(0, i - 30):i + 1] if x.kind != 'none']
            head = [x for x in ins[tgt:tgt + 30] if x.kind != 'none']
            for hi, h in enumerate(head):
                dist = sum(x.states for x in head[:hi])
                for p in reversed(tail):
                    k = need(p, h)
                    if k > dist:
                        raise RuntimeError(f"hazard across branch {c.text.strip()}: {p.text.strip()} -> {h.text.strip()} needs {k}, has {dist}")
                    dist += p.states
                    if dist >= 20: break

class Asm:
    def __init__(self): self.l = []
    def __call__(self, t):
        for x in t.split('\n'):
            x = x.strip()
            if x: self.l.append(x if x.endswith(':') else '    ' + x)
    def label(self, n): self.l.append(n + ':')
    def done(self):
        o = pad(self.l); check_loops(o); return o

def interleave(main, fill, spec=None):
    out = []
    n = len(main)
    if spec is None:
        spec = [0] * n
        for i in range(len(fill)): spec[i * n // len(fill)] += 1
    k = 0
    for i, m in enumerate(main):
        out.append(m)
        out += fill[k:k + spec[i]]; k += spec[i]
    out += fill[k:]
    return out

def kernel_text(name, body_lines, vgpr, sgpr=96, accum=None):
    accum = accum or ((vgpr + 3) // 4 * 4)
    head = f".text\n.globl {name}\n.p2align 8\n.type {name},@function\n{name}:\n"
    return head + "\n".join(body_lines) + "\n"

def kernel_desc(name, vgpr, sgpr=96, accum=None):
    accum = accum or min(256, (vgpr + 3) // 4 * 4)
    return f""".p2align 6
.amdhsa_kernel {name}
  .amdhsa_next_free_vgpr {vgpr}
  .amdhsa_next_free_sgpr {sgpr}
  .amdhsa_accum_offset {accum}
  .amdhsa_group_segment_fixed_size 0
  .amdhsa_kernarg_size 80
  .amdhsa_user_sgpr_count 2
  .amdhsa_user_sgpr_kernarg_segment_ptr 1
  .amdhsa_system_sgpr_workgroup_id_x 1
.end_amdhsa_kernel
"""
```

```python
from asmlib import *
WS_H  = 0
WS_XN = 8 << 20
WS_X1 = 10 << 20
WS_WT = 12 << 20
WS_Z  = 14 << 20
WS_END = 16 << 20
H_BYTES = 64 * 112 * 1024
W_BYTES = 2048 * 257 * 2
WG_BYTES = 512 * 1792 * 2

def srd(A, d, base, off, size):
    if off:
        A(f"s_add_u32 {s(d)}, {s(base)}, {hex(off)}")
        A(f"s_addc_u32 {s(d+1)}, {s(base+1)}, 0")
    else:
        A(f"s_mov_b32 {s(d)}, {s(base)}")
        A(f"s_mov_b32 {s(d+1)}, {s(base+1)}")
    A(f"s_mov_b32 {s(d+2)}, {hex(size)}")
    A(f"s_mov_b32 {s(d+3)}, 0x20000")

def f32(x):
    import struct
    return hex(struct.unpack('<I', struct.pack('<f', x))[0])
```

```python
from common import *
def phase0(A, st_flags=""):
    X, WR, WI, XN, X1, WT = 12, 16, 20, 24, 28, 32
    sW = 36
    L_ROW = 0
    L_X1 = 10240
    L_WT = 18432
    vL = 1
    A("s_load_dwordx4 s[4:7], s[0:1], 0")
    A("s_load_dwordx2 s[8:9], s[0:1], 16")
    A("s_load_dwordx2 s[10:11], s[0:1], 72")
    A(f"v_and_b32 {v(vL)}, 63, v0")
    A("v_lshrrev_b32 v2, 6, v0")
    A(f"v_readfirstlane_b32 {s(sW)}, v2")
    A(f"v_lshlrev_b32 v2, 4, {v(vL)}")
    A("s_lshr_b32 s37, s2, 5")
    A("s_lshl_b32 s37, s37, 8")
    A("s_and_b32 s38, s2, 31")
    A("s_add_u32 s37, s37, s38")
    A(f"s_lshl_b32 s38, {s(sW)}, 6")
    A("s_add_u32 s37, s37, s38")
    A("s_lshl_b32 s37, s37, 10")
    A("s_add_u32 s38, s37, 32768")
    A("s_and_b32 s39, s2, 63")
    A("s_lshr_b32 s40, s2, 6")
    A("s_lshl_b32 s40, s40, 9")
    A("s_add_u32 s39, s39, s40")
    A(f"s_lshl_b32 s40, {s(sW)}, 7")
    A("s_add_u32 s39, s39, s40")
    A("s_mul_i32 s39, s39, 514")
    A("s_add_u32 s39, s39, 2")
    A("s_and_b32 s48, s39, 2")
    A("s_and_b32 s39, s39, 0xfffffffc")
    A("s_add_u32 s49, s39, 32896")
    A(f"v_lshrrev_b32 v3, 5, {v(vL)}")
    A(f"v_and_b32 v4, 31, {v(vL)}")
    A(f"v_cmp_gt_u32 vcc, 33, {v(vL)}")
    A("v_mov_b32 v5, 0x7ff00000")
    A("v_cndmask_b32 v5, v5, v2, vcc")
    A("s_waitcnt lgkmcnt(0)")
    srd(A, X, 4, 0, 0x200000)
    A(f"buffer_load_dwordx4 v[8:11], v2, {s(X,4)}, s37 offen")
    A(f"buffer_load_dwordx4 v[12:15], v2, {s(X,4)}, s38 offen")
    srd(A, WR, 6, 0, W_BYTES)
    srd(A, WI, 8, 0, W_BYTES)
    A(f"s_lshl_b32 s41, {s(sW)}, 11")
    A(f"s_add_u32 m0, s41, {L_WT}")
    srd(A, XN, 10, WS_XN, 0x200000)
    A(f"buffer_load_dwordx4 v5, {s(WR,4)}, s39 offen lds")
    A(f"s_add_u32 m0, s41, {L_WT+1024}")
    A(f"buffer_load_dwordx4 v5, {s(WR,4)}, s49 offen lds")
    A(f"s_add_u32 m0, s41, {L_WT+8192}")
    srd(A, X1, 10, WS_X1, 0x200000)
    A(f"buffer_load_dwordx4 v5, {s(WI,4)}, s39 offen lds")
    A(f"s_add_u32 m0, s41, {L_WT+8192+1024}")
    A(f"buffer_load_dwordx4 v5, {s(WI,4)}, s49 offen lds")
    srd(A, WT, 10, WS_WT, 0x200000)
    GRE, GIM = 64, 72
    TC, TS = 80, 88
    AB = 96
    T0, T1, T2, T3 = 16, 17, 18, 19
    A("v_add_u32 v6, 1, v4")
    A("v_cvt_f32_u32 v6, v6")
    A(f"v_mul_f32 v7, {f32(1/32)}, v6")
    A("v_cvt_f32_u32 v20, v3")
    A("v_mul_f32 v21, 8.0, v20") if False else None
    A(f"v_mul_f32 v21, {f32(8.0)}, v20")
    for ks in range(2):
        for i in range(4):
            a0 = 16 * ks + 2 * i
            A(f"v_add_f32 {v(T0)}, {f32(a0)}, v21")
            A(f"v_add_f32 {v(T1)}, {f32(a0+1)}, v21")
            A(f"v_mul_f32 {v(T0)}, {v(T0)}, v7")
            A(f"v_mul_f32 {v(T1)}, {v(T1)}, v7")
            A(f"v_cos_f32 {v(T2)}, {v(T0)}")
            A(f"v_cos_f32 {v(T3)}, {v(T1)}")
            A(f"v_sin_f32 {v(T0)}, {v(T0)}")
            A(f"v_sin_f32 {v(T1)}, {v(T1)}")
            A(f"v_cvt_pk_bf16_f32 {v(GRE+4*ks+i)}, {v(T2)}, {v(T3)}")
            A(f"v_cvt_pk_bf16_f32 {v(GIM+4*ks+i)}, -{v(T0)}, -{v(T1)}")
    A(f"v_mul_f32 v7, {f32(1/512)}, v6")
    A(f"v_mul_f32 v22, 4.0, v20")
    for q in range(8):
        b0 = 8 * (q // 4) + q % 4
        A(f"v_add_f32 {v(T0)}, {f32(b0)}, v22")
        A(f"v_mul_f32 {v(T0)}, {v(T0)}, v7")
        A(f"v_cos_f32 {v(TC+q)}, {v(T0)}")
        A(f"v_sin_f32 {v(TS+q)}, {v(T0)}")
    A("v_and_b32 v6, 7, v4")
    A("v_cvt_f32_u32 v6, v6")
    A(f"v_mul_f32 v7, {f32(1/16)}, v6")
    A("v_bfe_u32 v6, v4, 3, 1")
    A("v_cvt_f32_u32 v6, v6")
    A(f"v_mul_f32 v6, {f32(0.25)}, v6")
    A("v_cmp_gt_u32 vcc, 16, v4")
    for i in range(4):
        for e in range(2):
            jj = 2 * i + e
            b0 = 8 * (jj // 4) + jj % 4
            A(f"v_add_f32 {v(T0+e)}, {f32(b0)}, v22")
            A(f"v_fma_f32 {v(T0+e)}, {v(T0+e)}, v7, v6")
        A(f"v_cos_f32 {v(T2)}, {v(T0)}")
        A(f"v_cos_f32 {v(T3)}, {v(T1)}")
        A(f"v_sin_f32 {v(T0)}, {v(T0)}")
        A(f"v_sin_f32 {v(T1)}, {v(T1)}")
        A(f"v_cvt_pk_bf16_f32 {v(T2)}, {v(T2)}, {v(T3)}")
        A(f"v_cvt_pk_bf16_f32 {v(T0)}, {v(T0)}, {v(T1)}")
        A(f"v_cndmask_b32 {v(AB+0+i)}, 0, {v(T2)}, vcc")
        A(f"v_cndmask_b32 {v(AB+4+i)}, 0, {v(T0)}, vcc")
        A(f"v_cndmask_b32 {v(AB+8+i)}, {v(T2)}, 0, vcc".replace(f"{v(T2)}, 0, vcc", f"{v(T2)}, 0, vcc"))
        A(f"v_cndmask_b32 {v(AB+12+i)}, {v(T0)}, 0, vcc")
    A(f"s_mul_i32 s42, {s(sW)}, 2560")
    A("v_add_u32 v23, s42, v2")
    A(f"v_bfe_u32 v6, {v(vL)}, 4, 1")
    A("v_mul_u32_u24 v6, 1152, v6")
    A("v_lshl_add_u32 v6, v3, 8, v6")
    A(f"v_bfe_u32 v7, {v(vL)}, 2, 2")
    A("v_lshl_add_u32 v6, v7, 5, v6")
    A(f"v_and_b32 v7, 3, {v(vL)}")
    A("v_lshl_add_u32 v6, v7, 3, v6")
    A("v_add_u32 v24, s42, v6")
    A("v_lshlrev_b32 v6, 4, v4")
    A("v_lshl_add_u32 v6, v3, 11, v6")
    A(f"s_lshl_b32 s43, {s(sW)}, 2")
    A(f"s_add_u32 s43, s43, {L_X1}")
    A("v_add_u32 v25, s43, v6")
    ONE = 26
    A(f"v_mov_b32 {v(ONE)}, 0x3f803f80")
    XF = 32
    A("s_waitcnt vmcnt(4)")
    A("v_mov_b32 v16, 0")
    A("v_mov_b32 v17, 0")
    for i in range(4):
        A(f"v_dot2c_f32_bf16 v16, v{8+i}, {v(ONE)}")
        A(f"v_dot2c_f32_bf16 v17, v{12+i}, {v(ONE)}")
    for i in range(8):
        A(f"v_lshlrev_b32 {v(XF+2*i)}, 16, v{8+i}")
        A(f"v_and_b32 {v(XF+2*i+1)}, 0xffff0000, v{8+i}")
    def reduce2(a, b):
        for m in ["row_shr:1", "row_shr:2", "row_shr:4", "row_shr:8"]:
            A(f"v_add_f32_dpp {v(a)}, {v(a)}, {v(a)} {m} row_mask:0xf bank_mask:0xf bound_ctrl:1")
            A(f"v_add_f32_dpp {v(b)}, {v(b)}, {v(b)} {m} row_mask:0xf bank_mask:0xf bound_ctrl:1")
        A(f"v_add_f32_dpp {v(a)}, {v(a)}, {v(a)} row_bcast:15 row_mask:0xa bank_mask:0xf")
        A(f"v_add_f32_dpp {v(b)}, {v(b)}, {v(b)} row_bcast:15 row_mask:0xa bank_mask:0xf")
        A(f"v_add_f32_dpp {v(a)}, {v(a)}, {v(a)} row_bcast:31 row_mask:0xc bank_mask:0xf")
        A(f"v_add_f32_dpp {v(b)}, {v(b)}, {v(b)} row_bcast:31 row_mask:0xc bank_mask:0xf")
    reduce2(16, 17)
    A("v_readlane_b32 s44, v16, 63")
    A("v_readlane_b32 s45, v17, 63")
    A(f"v_mov_b32 v18, {f32(-1/512)}")
    A("v_mul_f32 v16, s44, v18")
    A("v_mul_f32 v17, s45, v18")
    for i in range(8): A(f"v_add_f32 {v(XF+i)}, {v(XF+i)}, v16")
    for i in range(8): A(f"v_add_f32 {v(XF+8+i)}, {v(XF+8+i)}, v17")
    A(f"v_mul_f32 v18, {v(XF)}, {v(XF)}")
    A(f"v_mul_f32 v19, {v(XF+8)}, {v(XF+8)}")
    for i in range(1, 8):
        A(f"v_fmac_f32 v18, {v(XF+i)}, {v(XF+i)}")
        A(f"v_fmac_f32 v19, {v(XF+8+i)}, {v(XF+8+i)}")
    A("v_cvt_pk_bf16_f32 v20, v16, v17")
    A("v_lshlrev_b32 v21, 16, v20")
    A("v_and_b32 v20, 0xffff0000, v20")
    A("v_sub_f32 v16, v21, v16")
    A("v_sub_f32 v17, v20, v17")
    reduce2(18, 19)
    A("v_readlane_b32 s44, v18, 63")
    A("v_readlane_b32 s45, v19, 63")
    A(f"v_mov_b32 v20, {f32(1/512)}")
    A("v_mul_f32 v18, s44, v20")
    A("v_mul_f32 v19, s45, v20")
    def rnd():
        A("v_cvt_pk_bf16_f32 v20, v18, v19")
        A("v_lshlrev_b32 v18, 16, v20")
        A("v_and_b32 v19, 0xffff0000, v20")
    rnd()
    A(f"v_add_f32 v18, {f32(1e-5)}, v18")
    A(f"v_add_f32 v19, {f32(1e-5)}, v19")
    rnd()
    A("v_sqrt_f32 v18, v18")
    A("v_sqrt_f32 v19, v19")
    rnd()
    A("v_rcp_f32 v18, v18")
    A("v_rcp_f32 v19, v19")
    A("v_mul_f32 v16, v16, v18")
    A("v_mul_f32 v17, v17, v19")
    for i in range(8): A(f"v_fma_f32 {v(XF+i)}, {v(XF+i)}, v18, v16")
    for i in range(8): A(f"v_fma_f32 {v(XF+8+i)}, {v(XF+8+i)}, v19, v17")
    for i in range(8): A(f"v_cvt_pk_bf16_f32 v{8+i}, {v(XF+2*i)}, {v(XF+2*i+1)}")
    A(f"buffer_store_dwordx4 v[8:11], v2, {s(XN,4)}, s37 offen {st_flags}")
    A(f"buffer_store_dwordx4 v[12:15], v2, {s(XN,4)}, s38 offen {st_flags}")
    A("ds_write_b128 v23, v[8:11]")
    A("ds_write_b128 v23, v[12:15] offset:1152")
    A("s_waitcnt lgkmcnt(0)")
    PA = 16
    for ks in range(2):
        for u in range(2):
            A(f"ds_read_b64_tr_b16 {v(PA+4*ks+2*u,2)}, v24 offset:{ks*512+u*128}")
    DR, DI = 32, 48
    A("s_waitcnt lgkmcnt(2)")
    A(f"v_mfma_f32_32x32x16_bf16 {v(DR,16)}, {v(PA,4)}, {v(GRE,4)}, 0")
    A(f"v_mfma_f32_32x32x16_bf16 {v(DI,16)}, {v(PA,4)}, {v(GIM,4)}, 0")
    A("s_waitcnt lgkmcnt(0)")
    A(f"v_mfma_f32_32x32x16_bf16 {v(DR,16)}, {v(PA+4,4)}, {v(GRE+4,4)}, {v(DR,16)}")
    A(f"v_mfma_f32_32x32x16_bf16 {v(DI,16)}, {v(PA+4,4)}, {v(GIM+4,4)}, {v(DI,16)}")
    A("s_waitcnt vmcnt(2)")
    A("s_barrier")
    WTR = 112
    WTH = 124
    A(f"s_lshr_b32 s46, {s(sW)}, 1")
    A("s_lshl_b32 s46, s46, 13")
    A("s_add_u32 s46, s46, s48")
    A(f"s_and_b32 s47, {s(sW)}, 1")
    A("s_lshl_b32 s47, s47, 8")
    A("s_add_u32 s46, s46, s47")
    A(f"s_add_u32 s46, s46, {L_WT}")
    A(f"v_lshlrev_b32 v6, 1, {v(vL)}")
    A("v_add_u32 v6, s46, v6")
    for t in range(2):
        for i in range(4):
            A(f"ds_read_u16 {v(WTR+4*t+i)}, v6 offset:{t*128+(2*i)*1024}")
            A(f"ds_read_u16 {v(WTH+4*t+i)}, v6 offset:{t*128+(2*i+1)*1024}")
    BF = 8
    TMP = 120
    for rho in range(2):
        for q in range(4):
            rr = 8 * rho + 2 * q
            c = v(TC + 2*q, 2); sn = v(TS + 2*q, 2)
            A(f"v_pk_mul_f32 {v(TMP,2)}, {v(DR+rr,2)}, {c}")
            A(f"v_pk_mul_f32 {v(TMP+2,2)}, {v(DI+rr,2)}, {c}")
            A(f"v_pk_fma_f32 {v(TMP,2)}, {v(DI+rr,2)}, {sn}, {v(TMP,2)}")
            A(f"v_pk_fma_f32 {v(TMP+2,2)}, {v(DR+rr,2)}, {sn}, {v(TMP+2,2)} neg_lo:[1,0,0] neg_hi:[1,0,0]")
            A(f"v_cvt_pk_bf16_f32 {v(BF+8*rho+q)}, {v(TMP)}, {v(TMP+1)}")
            A(f"v_cvt_pk_bf16_f32 {v(BF+8*rho+4+q)}, {v(TMP+2)}, {v(TMP+3)}")
    for k in range(4):
        A(f"v_mfma_f32_32x32x16_bf16 {v(DR,16)}, {v(AB+4*k,4)}, {v(BF+4*k,4)}, {v(DR,16) if k else 0}")
    A(f"s_lshl_b32 s46, s2, 13")
    A(f"s_lshl_b32 s47, {s(sW)}, 11")
    A("s_add_u32 s46, s46, s47")
    A("s_waitcnt lgkmcnt(0)")
    for i in range(8): A(f"v_lshl_or_b32 {v(WTR+i)}, {v(WTH+i)}, 16, {v(WTR+i)}")
    A(f"buffer_store_dwordx4 {v(WTR,4)}, v2, {s(WT,4)}, s46 offen {st_flags}")
    A(f"buffer_store_dwordx4 {v(WTR+4,4)}, v2, {s(WT,4)}, s46 offen offset:1024 {st_flags}")
    for c in range(2):
        for r in range(4):
            A(f"v_cvt_pk_bf16_f32 {v(DI+4*c+r)}, {v(DR+4*c+r)}, {v(DR+8+4*c+r)}")
            A(f"ds_write_b32 v25, {v(DI+4*c+r)} offset:{c*4096+r*512}")
    A(f"v_add_u32 v6, s47, v2")
    A("s_waitcnt lgkmcnt(0)")
    A("s_barrier")
    A(f"ds_read_b128 v[8:11], v6 offset:{L_X1}")
    A(f"ds_read_b128 v[12:15], v6 offset:{L_X1+1024}")
    A("s_waitcnt lgkmcnt(1)")
    A(f"buffer_store_dwordx4 v[8:11], v2, {s(X1,4)}, s46 offen {st_flags}")
    A("s_waitcnt lgkmcnt(0)")
    A(f"buffer_store_dwordx4 v[12:15], v2, {s(X1,4)}, s46 offen offset:1024 {st_flags}")

def k0():
    A = Asm()
    A("s_cmp_ge_u32 s2, 256")
    A("s_cbranch_scc1 L_k0_end")
    phase0(A)
    A.label("L_k0_end")
    A("s_endpgm")
    return A.done()
```

```python
from common import *
MF32 = "v_mfma_f32_32x32x16_bf16"
RING = 131072
ACC = 128
XA = 64
WA = 96
vXr = 2
vWr = 6; vXd = 7; vWd = 9; vL16 = 10
XN, WGs, WUs, HS = 12, 16, 20, 24
sW, sRB, sCT = 36, 37, 38
sXo = 40
sXm = 41
sWo = 42
sWm = 43
sIt = 44
sT = 46

def phaseB_setup(A):
    A(f"v_lshlrev_b32 {v(vL16)}, 4, v1")
    A("v_lshrrev_b32 v11, 3, v1")
    A("v_and_b32 v12, 7, v1")
    A("v_lshrrev_b32 v13, 4, v1")
    A("v_xor_b32 v12, v12, v13")
    A("v_lshlrev_b32 v12, 4, v12")
    A(f"v_lshl_add_u32 {v(vXd)}, v11, 10, v12")
    A(f"v_xor_b32 {v(vXd+1)}, 64, {v(vXd)}")
    A("v_lshrrev_b32 v11, 2, v1")
    A("v_mul_u32_u24 v11, 3584, v11")
    A("v_and_b32 v12, 3, v1")
    A(f"v_lshl_add_u32 {v(vWd)}, v12, 4, v11")
    A(f"s_lshl_b32 {s(sXo)}, {s(sRB)}, 17")
    A(f"s_lshl_b32 {s(sT)}, {s(sW)}, 13")
    A(f"s_add_u32 {s(sXo)}, {s(sXo)}, {s(sT)}")
    A(f"s_lshl_b32 {s(sXm)}, {s(sW)}, 12")
    A(f"s_lshl_b32 {s(sWo)}, {s(sCT)}, 8")
    A(f"s_lshl_b32 {s(sT+1)}, {s(sW)}, 6")
    A(f"s_add_u32 {s(sWo)}, {s(sWo)}, {s(sT+1)}")
    A(f"s_add_u32 {s(sWm)}, {s(sT)}, {RING}")

def xdma(u, ld=""):
    return [f"s_add_u32 m0, {s(sXm)}, {u*1024}",
            f"s_add_u32 {s(sT)}, {s(sXo)}, {u*32768}",
            f"buffer_load_dwordx4 {v(vXd+(u%2))}, {s(XN,4)}, {s(sT)} offen {ld} lds"]
def xadv():
    return [f"s_add_u32 {s(sXo)}, {s(sXo)}, 128", f"s_add_u32 {s(sXm)}, {s(sXm)}, 16384"]
def wdma(slot):
    return [f"s_add_u32 m0, {s(sWm)}, {slot*2048}",
            f"s_nop 0",
            f"buffer_load_dwordx4 {v(vWd)}, {s(WGs,4)}, {s(sWo)} offen lds",
            f"s_add_u32 m0, {s(sWm)}, {slot*2048+1024}",
            f"s_nop 0",
            f"buffer_load_dwordx4 {v(vWd)}, {s(WUs,4)}, {s(sWo)} offen lds",
            f"s_add_u32 {s(sWo)}, {s(sWo)}, {16*3584}"]

def phaseB_addr2(A):
    A("v_and_b32 v11, 31, v1")
    A("v_lshrrev_b32 v12, 5, v1")
    A("v_bfe_u32 v13, v1, 1, 3")
    for jj in range(4):
        A(f"v_or_b32 v14, {2*jj}, v12")
        A("v_xor_b32 v14, v14, v13")
        A("v_lshlrev_b32 v14, 4, v14")
        A(f"v_lshl_add_u32 {v(vXr+jj)}, v11, 7, v14")
    A("v_lshlrev_b32 v14, 9, v12")
    A("v_bfe_u32 v13, v1, 2, 2")
    A("v_lshl_add_u32 v14, v13, 6, v14")
    A("v_bfe_u32 v13, v1, 4, 1")
    A("v_lshl_add_u32 v14, v13, 5, v14")
    A("v_and_b32 v13, 1, v1")
    A("v_lshl_add_u32 v14, v13, 4, v14")
    A("v_bfe_u32 v13, v1, 1, 1")
    A("v_lshl_add_u32 v14, v13, 3, v14")
    A(f"v_add_u32 {v(vWr)}, {s(sWm)}, v14")

def reads(js):
    pb = js % 2; jj = js % 4
    r = []
    for mat in range(2):
        for u in range(2):
            r.append(f"ds_read_b64_tr_b16 {v(WA+8*pb+4*mat+2*u,2)}, {v(vWr)} offset:{jj*2048+mat*1024+u*256}")
    for rt in range(4):
        r.append(f"ds_read_b128 {v(XA+16*pb+4*rt,4)}, {v(vXr+jj)} offset:{rt*4096}")
    return r

def step(A, js, vm, do_x, do_w, do_reads=True, ld=""):
    pb = js % 2
    mf = [f"{MF32} {v(ACC+32*rt+16*mat,16)}, {v(WA+8*pb+4*mat,4)}, {v(XA+16*pb+4*rt,4)}, {v(ACC+32*rt+16*mat,16)}"
          for rt in range(4) for mat in range(2)]
    gaps = [[] for _ in range(8)]
    if do_reads:
        g0 = [f"s_waitcnt vmcnt({vm})"]
        if (js + 1) % 4 == 0:
            g0 += ["s_barrier"] + [f"v_add_u32 {v(vXr)}, 16384, {v(vXr)}".replace("16384", "0x4000")]
        gaps[0] += g0
        rd = reads(js + 1)
        gaps[0] += rd[0:2]; gaps[1] += rd[2:5]; gaps[2] += rd[5:7]; gaps[3] += rd[7:8]
        jn = (js + 1) % 4
        if jn == 0:
            gaps[3] += [f"v_add_u32 {v(vXr+k)}, 0x4000, {v(vXr+k)}" for k in (1, 2, 3)]
    if do_w:
        w = wdma(js % 4)
        gaps[4] += w[0:1] + w[2:3]; gaps[5] += w[3:4] + w[5:7]
        gaps[4].insert(1, "s_nop 0"); gaps[5].insert(1, "s_nop 0")
    if do_x:
        gaps[6] += xdma(js % 4, ld)
        if js % 4 == 3: gaps[7] += xadv()
    A("s_waitcnt lgkmcnt(0)")
    for m, g in zip(mf, gaps):
        A(m)
        for x in g: A(x)

def phaseB_prologue_w(A):
    for sl in range(4):
        for x in wdma(sl): A(x)

def phaseB_main(A, ld="", st=""):
    for i in range(128): A(f"v_mov_b32 {v(ACC+i)}, 0")
    A("s_waitcnt vmcnt(10)")
    A("s_barrier")
    for x in reads(0): A(x)
    A(f"s_mov_b32 {s(sIt)}, 0")
    A.label("L_b_loop")
    for js in range(4): step(A, js, 7, True, True, ld=ld)
    A(f"s_add_u32 {s(sIt)}, {s(sIt)}, 1")
    A(f"s_cmp_lt_u32 {s(sIt)}, 6")
    A("s_cbranch_scc1 L_b_loop")
    vms = {24: 7, 25: 6, 26: 5, 27: 4, 28: 4, 29: 2, 30: 0}
    for js in range(24, 32):
        step(A, js, vms.get(js, 0), False, js < 28, do_reads=js < 31)
    A(f"s_mul_i32 {s(sT)}, {s(sRB)}, {4*114688}")
    A(f"s_lshl_b32 {s(sT+1)}, {s(sCT)}, 13")
    A(f"s_add_u32 {s(sT)}, {s(sT)}, {s(sT+1)}")
    A(f"s_lshl_b32 {s(sT+1)}, {s(sW)}, 11")
    A(f"s_add_u32 {s(sT)}, {s(sT)}, {s(sT+1)}")
    NL = 20
    A(f"v_mov_b32 {v(NL)}, {f32(-1.4426950408889634)}")
    A(f"v_mov_b32 {v(NL+1)}, {f32(-1.4426950408889634)}")
    OUT = 24
    for rt in range(4):
        G = ACC + 32*rt; U = G + 16
        for e in range(2):
            o = OUT + 4*((2*rt+e) % 4)
            for q in range(4):
                g = G + 8*e + 2*q
                A(f"v_pk_mul_f32 {v(g,2)}, {v(g,2)}, {v(NL,2)}")
            for q in range(8): A(f"v_exp_f32 {v(G+8*e+q)}, {v(G+8*e+q)}")
            for q in range(4):
                g = G + 8*e + 2*q
                A(f"v_pk_add_f32 {v(g,2)}, {v(g,2)}, 1.0 op_sel_hi:[1,0]")
            for q in range(8): A(f"v_rcp_f32 {v(G+8*e+q)}, {v(G+8*e+q)}")
            for q in range(4):
                g = G + 8*e + 2*q; u = U + 8*e + 2*q
                A(f"v_pk_mul_f32 {v(g,2)}, {v(g,2)}, {v(u,2)}")
            for q in range(4):
                g = G + 8*e + 2*q
                A(f"v_cvt_pk_bf16_f32 {v(o+q)}, {v(g)}, {v(g+1)}")
            A(f"buffer_store_dwordx4 {v(o,4)}, {v(vL16)}, {s(HS,4)}, {s(sT)} offen offset:{e*1024} {st}")
        if rt < 3: A(f"s_add_u32 {s(sT)}, {s(sT)}, 114688")

def wg_map_B(A, lab_skip):
    A("s_lshr_b32 s46, s2, 3")
    A("s_cmp_ge_u32 s46, 28")
    A(f"s_cbranch_scc1 {lab_skip}")
    A("s_mul_i32 s47, s46, 37")
    A("s_lshr_b32 s47, s47, 8")
    A("s_mul_i32 s48, s47, 7")
    A("s_sub_u32 s48, s46, s48")
    A("s_bfe_u32 s49, s2, 0x20001")
    A("s_lshl_b32 s49, s49, 2")
    A(f"s_add_u32 {s(sRB)}, s49, s47")
    A("s_and_b32 s49, s2, 1")
    A("s_mul_i32 s49, s49, 7")
    A(f"s_add_u32 {s(sCT)}, s49, s48")

def k1():
    A = Asm()
    A("s_load_dwordx4 s[4:7], s[0:1], 32")
    A("s_load_dwordx2 s[10:11], s[0:1], 72")
    wg_map_B(A, "L_k1_end")
    A("v_and_b32 v1, 63, v0")
    A("v_lshrrev_b32 v2, 6, v0")
    A(f"v_readfirstlane_b32 {s(sW)}, v2")
    phaseB_setup(A)
    A("s_waitcnt lgkmcnt(0)")
    srd(A, XN, 10, WS_XN, 0x200000)
    srd(A, WGs, 4, 0, WG_BYTES)
    srd(A, WUs, 6, 0, WG_BYTES)
    srd(A, HS, 10, WS_H, H_BYTES)
    for u in range(4):
        for x in xdma(u): A(x)
    for x in xadv(): A(x)
    phaseB_prologue_w(A)
    for u in range(4):
        for x in xdma(u): A(x)
    for x in xadv(): A(x)
    phaseB_addr2(A)
    phaseB_main(A)
    A.label("L_k1_end")
    A("s_endpgm")
    return A.done()
```

```python
from common import *
def phaseC_consts(A, R):
    GRE, GIM, HC, HS, HN, TC, TS = R['GRE'], R['GIM'], R['HC'], R['HS'], R['HN'], R['TC'], R['TS']
    T0, T1, T2, T3, KA, U0, U1, U2 = R['T'], R['T']+1, R['T']+2, R['T']+3, R['T']+4, R['T']+5, R['T']+6, R['T']+7
    vL = R['vL']; sW = R['sW']; sT = R['sT']
    A(f"v_and_b32 {v(KA)}, 15, {v(vL)}")
    A(f"s_lshl_b32 {s(sT)}, {s(sW)}, 4")
    A(f"v_add_u32 {v(KA)}, {s(sT)}, {v(KA)}")
    A(f"v_cvt_f32_u32 {v(KA)}, {v(KA)}")
    A(f"v_mul_f32 {v(U0)}, {f32(1/64)}, {v(KA)}")
    A(f"v_lshrrev_b32 {v(U1)}, 5, {v(vL)}")
    A(f"v_cvt_f32_u32 {v(U1)}, {v(U1)}")
    A(f"v_mul_f32 {v(U1)}, {f32(8.0)}, {v(U1)}")
    A(f"v_bfe_u32 {v(U2)}, {v(vL)}, 4, 1")
    A(f"v_cvt_f32_u32 {v(U2)}, {v(U2)}")
    A(f"v_mul_f32 {v(U2)}, {f32(-0.25)}, {v(U2)}")
    A(f"v_fma_f32 {v(U2)}, {v(U1)}, {v(U0)}, {v(U2)}")
    for ks in range(4):
        for i in range(4):
            a0 = 16 * ks + 2 * i
            A(f"v_mov_b32 {v(T0)}, {f32(a0)}")
            A(f"v_fma_f32 {v(T0)}, {v(T0)}, {v(U0)}, {v(U2)}")
            A(f"v_add_f32 {v(T1)}, {v(T0)}, {v(U0)}")
            A(f"v_cos_f32 {v(T2)}, {v(T0)}")
            A(f"v_cos_f32 {v(T3)}, {v(T1)}")
            A(f"v_sin_f32 {v(T0)}, {v(T0)}")
            A(f"v_sin_f32 {v(T1)}, {v(T1)}")
            A(f"v_cvt_pk_bf16_f32 {v(GRE+4*ks+i)}, {v(T2)}, {v(T3)}")
            A(f"v_cvt_pk_bf16_f32 {v(GIM+4*ks+i)}, -{v(T0)}, -{v(T1)}")
    A(f"v_mul_f32 {v(U0)}, {f32(1/2048)}, {v(KA)}")
    A(f"v_lshrrev_b32 {v(U1)}, 4, {v(vL)}")
    A(f"v_cvt_f32_u32 {v(U1)}, {v(U1)}")
    A(f"v_mul_f32 {v(U1)}, {f32(8.0)}, {v(U1)}")
    A(f"v_mul_f32 {v(T0)}, {v(U1)}, {v(U0)}")
    for q in range(8):
        A(f"v_cos_f32 {v(TC+q)}, {v(T0)}")
        A(f"v_sin_f32 {v(TS+q)}, {v(T0)}")
        if q < 7: A(f"v_add_f32 {v(T0)}, {v(T0)}, {v(U0)}")
    A(f"v_bfe_u32 {v(T0)}, {v(vL)}, 2, 2")
    A(f"v_and_b32 {v(T1)}, 3, {v(vL)}")
    A(f"v_lshl_add_u32 {v(T0)}, {v(T0)}, 3, {v(T1)}")
    A(f"v_cvt_f32_u32 {v(KA)}, {v(T0)}")
    for t in range(2):
        A(f"v_add_f32 {v(U0)}, {f32(4.0*t)}, {v(KA)}")
        A(f"v_mul_f32 {v(U0)}, {f32(1/32)}, {v(U0)}")
        A(f"v_mul_f32 {v(U2)}, {v(U1)}, {v(U0)}")
        for i in range(4):
            A(f"v_add_f32 {v(T1)}, {v(U2)}, {v(U0)}")
            A(f"v_cos_f32 {v(T2)}, {v(U2)}")
            A(f"v_cos_f32 {v(T3)}, {v(T1)}")
            A(f"v_sin_f32 {v(T0)}, {v(U2)}")
            A(f"v_add_f32 {v(U2)}, {v(T1)}, {v(U0)}")
            A(f"v_sin_f32 {v(T1)}, {v(T1)}")
            A(f"v_cvt_pk_bf16_f32 {v(HC+4*t+i)}, {v(T2)}, {v(T3)}")
            A(f"v_cvt_pk_bf16_f32 {v(HS+4*t+i)}, {v(T0)}, {v(T1)}")
            A(f"v_cvt_pk_bf16_f32 {v(HN+4*t+i)}, -{v(T0)}, -{v(T1)}")

MF16 = "v_mfma_f32_16x16x32_bf16"
def phaseC_issue(A, R, ld_flags=""):
    vL, sW, sT, sJ = R['vL'], R['sW'], R['sT'], R['sJ']
    T0, T1, T2 = R['T'], R['T']+1, R['T']+2
    A(f"v_lshrrev_b32 {v(T0)}, 5, {v(vL)}")
    A(f"v_lshlrev_b32 {v(T0)}, 18, {v(T0)}")
    A(f"v_bfe_u32 {v(T1)}, {v(vL)}, 2, 2")
    A(f"v_lshl_add_u32 {v(T0)}, {v(T1)}, 16, {v(T0)}")
    A(f"v_and_b32 {v(T1)}, 3, {v(vL)}")
    A(f"v_lshl_add_u32 {v(T0)}, {v(T1)}, 13, {v(T0)}")
    A(f"v_bfe_u32 {v(T1)}, {v(vL)}, 4, 1")
    A(f"v_lshl_add_u32 {v(T0)}, {v(T1)}, 12, {v(T0)}")
    A(f"s_and_b32 {s(sT)}, {s(sW)}, 1")
    A(f"s_lshl_b32 {s(sT)}, {s(sT)}, 20")
    A(f"s_lshr_b32 {s(sT+1)}, {s(sW)}, 1")
    A(f"s_lshl_b32 {s(sT+1)}, {s(sT+1)}, 15")
    A(f"s_add_u32 {s(sT)}, {s(sT)}, {s(sT+1)}")
    A(f"s_add_u32 {s(sT)}, {s(sT)}, {s(sJ)}")
    A(f"s_add_u32 {s(sT+1)}, {s(sT)}, 0x80000")
    A(f"s_lshl_b32 {s(sT+2)}, {s(sW)}, 11")
    A(f"s_add_u32 m0, {s(sT+2)}, {R['L_P']}")
    A(f"v_lshrrev_b32 {v(T1)}, 4, {v(vL)}")
    A(f"buffer_load_dwordx4 {v(T0)}, {s(R['X1'],4)}, {s(sT)} offen {ld_flags} lds")
    A(f"s_add_u32 m0, {s(sT+2)}, {R['L_P']+1024}")
    A(f"v_lshlrev_b32 {v(T1)}, 19, {v(T1)}")
    A(f"buffer_load_dwordx4 {v(T0)}, {s(R['X1'],4)}, {s(sT+1)} offen {ld_flags} lds")
    A(f"v_and_b32 {v(T2)}, 15, {v(vL)}")
    A(f"v_lshl_add_u32 {v(T1)}, {v(T2)}, 13, {v(T1)}")
    A(f"s_lshl_b32 {s(sT)}, {s(sW)}, 17")
    A(f"s_add_u32 {s(sT)}, {s(sT)}, {s(sJ)}")
    A(f"s_add_u32 {s(sT+1)}, {s(sT)}, 4096")
    A(f"buffer_load_dwordx4 {v(R['WV'],4)}, {v(T1)}, {s(R['WT'],4)}, {s(sT)} offen {ld_flags}")
    A(f"buffer_load_dwordx4 {v(R['WV']+4,4)}, {v(T1)}, {s(R['WT'],4)}, {s(sT+1)} offen {ld_flags}")

def phaseC_main(A, R, st_flags="", nvm_after=0):
    GRE, GIM, HC, HS, HN, TC, TS = R['GRE'], R['GIM'], R['HC'], R['HS'], R['HN'], R['TC'], R['TS']
    vL, sW, sT, sJ = R['vL'], R['sW'], R['sT'], R['sJ']
    P = R['P']
    DR, DI = R['D'], R['D'] + 8
    BR, BI = R['B'], R['B'] + 4
    T = R['T']
    WF = R['WF']
    AD = R['AD']
    A(f"v_lshlrev_b32 {v(AD)}, 4, {v(vL)}")
    A(f"v_and_b32 {v(T)}, 15, {v(vL)}")
    A(f"v_lshlrev_b32 {v(T)}, 6, {v(T)}")
    A(f"v_lshrrev_b32 {v(T+1)}, 4, {v(vL)}")
    A(f"v_lshl_add_u32 {v(T)}, {v(T+1)}, 4, {v(T)}")
    A(f"s_lshl_b32 {s(sT)}, {s(sW)}, 10")
    A(f"v_add_u32 {v(AD+1)}, {s(sT)}, {v(T)}")
    A(f"v_bfe_u32 {v(T)}, {v(vL)}, 4, 1")
    A(f"v_lshlrev_b32 {v(T)}, 12, {v(T)}")
    A(f"v_lshrrev_b32 {v(T+1)}, 5, {v(vL)}")
    A(f"v_lshl_add_u32 {v(T)}, {v(T+1)}, 9, {v(T)}")
    A(f"v_and_b32 {v(T+1)}, 15, {v(vL)}")
    A(f"v_lshl_add_u32 {v(AD+2)}, {v(T+1)}, 4, {v(T)}")
    A(f"s_lshl_b32 {s(sT+1)}, {s(sJ)}, 9")
    A(f"s_add_u32 {s(sT+2)}, {s(sT+1)}, {s(sT)}")
    A(f"s_add_u32 {s(sT+3)}, {s(sT+2)}, 4096")
    A(f"s_waitcnt vmcnt({2+nvm_after})")
    A("s_barrier")
    for f in range(8):
        A(f"ds_read_b128 {v(P+4*f,4)}, {v(AD)} offset:{R['L_P']+1024*f}")
    def gstep():
        for ks in range(4):
            for t in range(2):
                if gstep.wait is not None: A(f"s_waitcnt lgkmcnt({gstep.wait(t, ks)})")
                A(f"{MF16} {v(DR+4*t,4)}, {v(P+16*t+4*ks,4)}, {v(GRE+4*ks,4)}, {v(DR+4*t,4) if ks else 0}")
                A(f"{MF16} {v(DI+4*t,4)}, {v(P+16*t+4*ks,4)}, {v(GIM+4*ks,4)}, {v(DI+4*t,4) if ks else 0}")
    gstep.wait = None
    A("s_waitcnt lgkmcnt(0)")
    gstep()
    def twiddle():
        for q in range(4):
            c = v(TC+2*q, 2); sn = v(TS+2*q, 2); t0 = T + 4*(q % 2)
            A(f"v_pk_mul_f32 {v(t0,2)}, {v(DR+2*q,2)}, {c}")
            A(f"v_pk_mul_f32 {v(t0+2,2)}, {v(DI+2*q,2)}, {c}")
            A(f"v_pk_fma_f32 {v(t0,2)}, {v(DI+2*q,2)}, {sn}, {v(t0,2)}")
            A(f"v_pk_fma_f32 {v(t0+2,2)}, {v(DR+2*q,2)}, {sn}, {v(t0+2,2)} neg_lo:[1,0,0] neg_hi:[1,0,0]")
            A(f"v_cvt_pk_bf16_f32 {v(BR+q)}, {v(t0)}, {v(t0+1)}")
            A(f"v_cvt_pk_bf16_f32 {v(BI+q)}, {v(t0+2)}, {v(t0+3)}")
    def hstep():
        for t in range(2):
            A(f"{MF16} {v(DR+4*t,4)}, {v(HC+4*t,4)}, {v(BR,4)}, 0")
            A(f"{MF16} {v(DI+4*t,4)}, {v(HC+4*t,4)}, {v(BI,4)}, 0")
        for t in range(2):
            A(f"{MF16} {v(DR+4*t,4)}, {v(HS+4*t,4)}, {v(BI,4)}, {v(DR+4*t,4)}")
            A(f"{MF16} {v(DI+4*t,4)}, {v(HN+4*t,4)}, {v(BR,4)}, {v(DI+4*t,4)}")
    A(f"s_waitcnt vmcnt({nvm_after})")
    for i in range(8):
        A(f"v_lshlrev_b32 {v(WF+2*i)}, 16, {v(R['WV']+i)}")
        A(f"v_and_b32 {v(WF+2*i+1)}, 0xffff0000, {v(R['WV']+i)}")
    twiddle()
    hstep()
    for q in range(4):
        wr = v(WF+2*q, 2); wi = v(WF+8+2*q, 2); t0 = T + 4*(q % 2)
        A(f"v_pk_mul_f32 {v(t0,2)}, {v(DR+2*q,2)}, {wr}")
        A(f"v_pk_mul_f32 {v(t0+2,2)}, {v(DI+2*q,2)}, {wr}")
        A(f"v_pk_fma_f32 {v(t0,2)}, {v(DI+2*q,2)}, {wi}, {v(t0,2)} neg_lo:[1,0,0] neg_hi:[1,0,0]")
        A(f"v_pk_fma_f32 {v(t0+2,2)}, {v(DR+2*q,2)}, {wi}, {v(t0+2,2)}")
        A(f"v_cvt_pk_bf16_f32 {v(BR+q)}, {v(t0)}, {v(t0+1)}")
        A(f"v_cvt_pk_bf16_f32 {v(BI+q)}, -{v(t0+2)}, -{v(t0+3)}")
    hstep()
    twiddle()
    A(f"ds_write_b128 {v(AD+1)}, {v(BR,4)} offset:{R['L_T']}")
    A(f"ds_write_b128 {v(AD+1)}, {v(BI,4)} offset:{R['L_T']+4096}")
    A("s_waitcnt lgkmcnt(0)")
    A("s_barrier")
    for ks in range(4):
        for t in range(2):
            for u in range(2):
                A(f"ds_read_b64_tr_b16 {v(P+16*t+4*ks+2*u,2)}, {v(AD+2)} offset:{R['L_T']+ks*1024+u*256+t*8}")
    gstep.wait = lambda t, ks: 14 - 2*(2*ks + t)
    gstep()
    for i in range(4): A(f"v_cvt_pk_bf16_f32 {v(BR+i)}, {v(DR+2*i)}, {v(DR+2*i+1)}")
    A(f"buffer_store_dwordx4 {v(BR,4)}, {v(AD)}, {s(R['Z'],4)}, {s(sT+2)} offen {st_flags}")
    for i in range(4): A(f"v_cvt_pk_bf16_f32 {v(BI+i)}, {v(DI+2*i)}, {v(DI+2*i+1)}")
    A(f"buffer_store_dwordx4 {v(BI,4)}, {v(AD)}, {s(R['Z'],4)}, {s(sT+3)} offen {st_flags}")

def k2():
    A = Asm()
    R = dict(vL=1, sW=36, sT=40, sJ=37, X1=12, WT=16, Z=20, L_P=0, L_T=8192,
             T=2, AD=10, WV=16, GRE=24, GIM=40, HC=56, HS=64, HN=72, TC=80, TS=88, P=96, D=128, B=144, WF=152)
    A("s_cmp_ge_u32 s2, 256")
    A("s_cbranch_scc1 L_k2_end")
    A("s_load_dwordx2 s[10:11], s[0:1], 72")
    A("v_and_b32 v1, 63, v0")
    A("v_lshrrev_b32 v2, 6, v0")
    A("v_readfirstlane_b32 s36, v2")
    A("s_and_b32 s37, s2, 7")
    A("s_lshl_b32 s37, s37, 5")
    A("s_lshr_b32 s38, s2, 3")
    A("s_add_u32 s37, s37, s38")
    A("s_lshl_b32 s37, s37, 4")
    A("s_waitcnt lgkmcnt(0)")
    srd(A, 12, 10, WS_X1, 0x200000)
    srd(A, 16, 10, WS_WT, 0x200000)
    srd(A, 20, 10, WS_Z, 0x200000)
    phaseC_issue(A, R)
    phaseC_consts(A, R)
    phaseC_main(A, R)
    A.label("L_k2_end")
    A("s_endpgm")
    return A.done()
```

```python
from common import *
MF32 = "v_mfma_f32_32x32x16_bf16"
NS = 8
PD = 5
vL16 = 2; vWd = 3; vTrW = 4; vTrZ = 5; vZd = 6; vRow = 7; vEx = 8
T = 10
XR = 20
YA = 32
EA = 64
FA = 80
IC = 96
HB = 160
NHB = (PD + 1) * 4
HSR, WDs, ZS, XS, OS = 12, 16, 20, 24, 28
sW, sKH, sRH, sTau, sCB = 36, 37, 38, 39, 40
sHo, sWo, sM, sIt, sZo = 41, 42, 43, 44, 45
sT = 46
sRd = 52

def wg_map_D(A):
    A("s_and_b32 s46, s2, 7")
    A("s_lshl_b32 s46, s46, 2")
    A("s_lshr_b32 s47, s2, 6")
    A("s_add_u32 s46, s46, s47")
    A(f"s_bfe_u32 {s(sCB)}, s2, 0x30003")
    A(f"s_and_b32 {s(sKH)}, {s(sW)}, 1")
    A(f"s_lshr_b32 {s(sRH)}, {s(sW)}, 1")
    A("s_lshl_b32 s46, s46, 1")
    A(f"s_add_u32 {s(sTau)}, s46, {s(sRH)}")

def setup(A):
    A(f"v_lshlrev_b32 {v(vL16)}, 4, v1")
    A(f"v_lshrrev_b32 {v(T)}, 2, v1")
    A(f"v_and_b32 {v(T+1)}, 3, v1")
    A(f"v_lshlrev_b32 {v(T+1)}, 4, {v(T+1)}")
    A(f"v_lshl_add_u32 {v(vWd)}, {v(T)}, 10, {v(T+1)}")
    A(f"v_lshrrev_b32 {v(T+2)}, 3, v1")
    A(f"v_lshl_add_u32 {v(vZd)}, {v(T+2)}, 14, {v(T+1)}")
    A(f"v_and_b32 {v(T+2)}, 1, {v(T)}")
    A(f"v_lshl_add_u32 {v(vZd)}, {v(T+2)}, 12, {v(vZd)}")
    A(f"s_mul_i32 {s(sHo)}, {s(sTau)}, 114688")
    A(f"s_mul_i32 {s(sT)}, {s(sKH)}, 57344")
    A(f"s_add_u32 {s(sHo)}, {s(sHo)}, {s(sT)}")
    A(f"s_mul_i32 {s(sWo)}, {s(sKH)}, {896*1024}")
    A(f"s_lshl_b32 {s(sT)}, {s(sCB)}, 6")
    A(f"s_add_u32 {s(sWo)}, {s(sWo)}, {s(sT)}")
    A(f"s_lshl_b32 {s(sT)}, {s(sRH)}, 9")
    A(f"s_add_u32 {s(sWo)}, {s(sWo)}, {s(sT)}")
    A(f"s_lshl_b32 {s(sM)}, {s(sKH)}, 13")
    A(f"s_lshl_b32 {s(sT)}, {s(sRH)}, 10")
    A(f"s_add_u32 {s(sM)}, {s(sM)}, {s(sT)}")
    A(f"s_xor_b32 {s(sZo)}, {s(sKH)}, 1")
    A(f"s_lshl_b32 {s(sZo)}, {s(sZo)}, 13")
    A(f"s_lshr_b32 {s(sT)}, {s(sTau)}, 4")
    A(f"s_lshl_b32 {s(sT)}, {s(sT)}, 10")
    A(f"s_add_u32 {s(sZo)}, {s(sZo)}, {s(sT)}")
    A(f"s_and_b32 {s(sT)}, {s(sTau)}, 3")
    A(f"s_lshl_b32 {s(sT)}, {s(sT)}, 8")
    A(f"s_add_u32 {s(sZo)}, {s(sZo)}, {s(sT)}")
    A(f"s_bfe_u32 {s(sT)}, {s(sTau)}, 0x20002")
    A(f"s_lshl_b32 {s(sT)}, {s(sT)}, 6")
    A(f"s_add_u32 {s(sZo)}, {s(sZo)}, {s(sT)}")

def setup2(A):
    A(f"v_lshrrev_b32 {v(T)}, 5, v1")
    A(f"v_lshlrev_b32 {v(T+1)}, 9, {v(T)}")
    A(f"v_bfe_u32 {v(T+2)}, v1, 2, 2")
    A(f"v_lshl_add_u32 {v(T+1)}, {v(T+2)}, 6, {v(T+1)}")
    A(f"v_bfe_u32 {v(T+2)}, v1, 4, 1")
    A(f"v_lshl_add_u32 {v(vTrZ)}, {v(T+2)}, 5, {v(T+1)}")
    A(f"v_and_b32 {v(T+3)}, 3, v1")
    A(f"v_lshl_add_u32 {v(vTrZ)}, {v(T+3)}, 3, {v(vTrZ)}")
    A(f"v_add_u32 {v(vTrZ)}, {s(sM)}, {v(vTrZ)}")
    A(f"v_lshl_add_u32 {v(vTrW)}, {v(T+2)}, 4, {v(T+1)}")
    A(f"v_and_b32 {v(T+3)}, 1, v1")
    A(f"v_lshl_add_u32 {v(vTrW)}, {v(T+3)}, 5, {v(vTrW)}")
    A(f"v_bfe_u32 {v(T+3)}, v1, 1, 1")
    A(f"v_lshl_add_u32 {v(vTrW)}, {v(T+3)}, 3, {v(vTrW)}")
    A(f"s_lshl_b32 {s(sT)}, {s(sKH)}, 13")
    A(f"v_add_u32 {v(vTrW)}, {s(sT)}, {v(vTrW)}")
    A(f"v_bfe_u32 {v(T+2)}, v1, 3, 2")
    A(f"v_lshlrev_b32 {v(T+2)}, 15, {v(T+2)}")
    A(f"v_and_b32 {v(T+3)}, 7, v1")
    A(f"v_lshl_add_u32 {v(T+2)}, {v(T+3)}, 10, {v(T+2)}")
    A(f"v_lshl_add_u32 {v(T+2)}, {v(T)}, 5, {v(T+2)}")
    A(f"s_lshr_b32 {s(sT)}, {s(sTau)}, 2")
    A(f"s_lshl_b32 {s(sT)}, {s(sT)}, 17")
    A(f"s_and_b32 {s(sT+1)}, {s(sTau)}, 3")
    A(f"s_lshl_b32 {s(sT+1)}, {s(sT+1)}, 13")
    A(f"s_add_u32 {s(sT)}, {s(sT)}, {s(sT+1)}")
    A(f"s_lshl_b32 {s(sT+1)}, {s(sCB)}, 6")
    A(f"s_add_u32 {s(sT)}, {s(sT)}, {s(sT+1)}")
    A(f"s_lshl_b32 {s(sT+1)}, {s(sKH)}, 9")
    A(f"s_add_u32 {s(sT)}, {s(sT)}, {s(sT+1)}")
    A(f"v_add_u32 {v(vRow)}, {s(sT)}, {v(T+2)}")

def idft_consts():
    L = []
    a = L.append
    a(f"v_bfe_u32 {v(T)}, v1, 2, 1")
    a(f"v_lshlrev_b32 {v(T)}, 4, {v(T)}")
    a(f"v_bfe_u32 {v(T+1)}, v1, 3, 2")
    a(f"v_lshl_add_u32 {v(T)}, {v(T+1)}, 2, {v(T)}")
    a(f"v_and_b32 {v(T+1)}, 3, v1")
    a(f"v_add_u32 {v(T)}, {v(T)}, {v(T+1)}")
    a(f"s_lshl_b32 {s(sT+4)}, {s(sCB)}, 5")
    a(f"v_add_u32 {v(T)}, {s(sT+4)}, {v(T)}")
    a(f"v_cvt_f32_u32 {v(T)}, {v(T)}")
    a(f"v_mul_f32 {v(T+4)}, {f32(1/256)}, {v(T)}")
    a(f"v_lshrrev_b32 {v(T+1)}, 5, v1")
    a(f"v_lshlrev_b32 {v(T+1)}, 3, {v(T+1)}")
    a(f"s_sub_u32 {s(sT+4)}, 2, {s(sKH)}")
    a(f"v_add_u32 {v(T+1)}, {s(sT+4)}, {v(T+1)}")
    a(f"v_cvt_f32_u32 {v(T+1)}, {v(T+1)}")
    a(f"v_mul_f32 {v(T+1)}, {v(T+1)}, {v(T)}")
    a(f"v_mul_f32 {v(T+5)}, {f32(1/512)}, {v(T+1)}")
    a(f"v_mul_f32 {v(T+6)}, 4.0, {v(T+4)}")
    for e in range(16):
        for ii in range(4):
            a(f"v_cos_f32 {v(T+2)}, {v(T+5)}")
            a(f"v_sin_f32 {v(T+3)}, {v(T+5)}")
            a(f"v_add_f32 {v(T+5)}, {v(T+5)}, {v(T+4)}")
            if e == 15 and ii == 3:
                a(f"v_lshrrev_b32 {v(T+1)}, 5, v1")
                a(f"s_xor_b32 {s(sT+4)}, {s(sKH)}, 1")
                a(f"v_and_b32 {v(T+1)}, {s(sT+4)}, {v(T+1)}")
                a(f"v_cvt_f32_u32 {v(T+1)}, {v(T+1)}")
                a(f"v_fma_f32 {v(T+1)}, {v(T+1)}, -0.5, 1.0")
                a(f"v_mul_f32 {v(T+2)}, {v(T+2)}, {v(T+1)}")
                a(f"v_mul_f32 {v(T+3)}, {v(T+3)}, {v(T+1)}")
            a(f"v_cvt_pk_bf16_f32 {v(IC+4*e+ii)}, {v(T+2)}, {v(T+3)}")
        if e < 15:
            a(f"v_add_f32 {v(T+5)}, {v(T+5)}, {v(T+6)}")
            a(f"v_fract_f32 {v(T+5)}, {v(T+5)}")
    return L

def loads(t, hl="", zl=""):
    G = []
    slot = t % NS
    for q in range(4):
        g = []
        if t < 14:
            g.append(f"s_add_u32 m0, {s(sM)}, {slot*16384 + q*2048}")
            f = (4*t + q) % NHB
            g.append(f"buffer_load_dwordx4 {v(HB+4*f,4)}, {v(vL16)}, {s(HSR,4)}, {s(sHo)} offen offset:{q*1024} {hl}")
            g.append(f"buffer_load_dwordx4 {v(vWd)}, {s(WDs,4)}, {s(sWo)} offen lds")
            g.append(f"s_add_u32 {s(sWo)}, {s(sWo)}, 16384")
            if q == 3: g.append(f"s_add_u32 {s(sHo)}, {s(sHo)}, 4096")
        elif t < 18:
            g.append(f"s_add_u32 m0, {s(sM)}, {slot*16384 + q*2048}")
            g.append("s_nop 0")
            g.append(f"buffer_load_dwordx4 {v(vZd)}, {s(ZS,4)}, {s(sZo)} offen {zl} lds")
            g.append(f"s_add_u32 {s(sZo)}, {s(sZo)}, {32*4096}")
        G.append(g)
    return G
def nloads(t): return 8 if t < 14 else 4 if t < 18 else 0

def reads(t, q):
    pb = q % 2; slot = t % NS
    base = slot*16384 + q*2048
    hi = base >= 65536
    r = []
    if t < 14:
        for cg in range(2):
            for u in range(2):
                r.append(f"ds_read_b64_tr_b16 {v(FA+8*pb+4*cg+2*u,2)}, {v(vTrW + (100 if False else 0))} offset:{(base + cg*1024 + u*256) % 65536}")
        if hi: r = [x.replace(f"{v(vTrW)} ", f"{v(vTrW2)} ") for x in r]
    else:
        for u in range(2):
            r.append(f"ds_read_b64_tr_b16 {v(FA+8*pb+2*u,2)}, {v(vTrZ2 if hi else vTrZ)} offset:{(base + u*256) % 65536}")
    return r
vTrW2 = 9; vTrZ2 = 19

def main(A, hl="", zl="", fillers=None):
    fillers = list(fillers or [])
    A(f"v_add_u32 {v(vTrW2)}, 0x10000, {v(vTrW)}")
    A(f"v_add_u32 {v(vTrZ2)}, 0x10000, {v(vTrZ)}")
    for i in range(48): A(f"v_mov_b32 {v(YA+i)}, 0")
    def after(t_need, t_cur, q_cur):
        n = 0
        for t in range(t_need + 1, t_cur + PD): n += nloads(t)
        n += nloads(t_cur + PD) // 4 * q_cur
        return n
    A(f"s_waitcnt vmcnt({after(0, 0, 0)})")
    A("s_barrier")
    for x in reads(0, 0): A(x)
    nsub = 18 * 4
    per = (len(fillers) + 55) // 56
    for t in range(18):
        G = loads(t + PD, hl, zl)
        for q in range(4):
            pb = q % 2
            if t < 14:
                f = (4*t + q) % NHB
                mf = [f"{MF32} {v(YA+16*cg,16)}, {v(FA+8*pb+4*cg,4)}, {v(HB+4*f,4)}, {v(YA+16*cg,16)}" for cg in range(2)]
            else:
                e = 4*(t-14) + q
                mf = [f"{MF32} {v(EA,16)}, {v(IC+4*e,4)}, {v(FA+8*pb,4)}, {v(EA,16)}"]
            pre = []
            nt, nq = (t, q+1) if q < 3 else (t+1, 0)
            if nt < 18:
                if nq == 0:
                    pre.append(f"s_waitcnt vmcnt({after(nt, t, 3)})")
                    pre.append("s_barrier")
                pre += reads(nt, nq)
            A("s_waitcnt lgkmcnt(0)")
            A(mf[0])
            for x in pre: A(x)
            if len(mf) > 1: A(mf[1])
            for x in G[q]: A(x)
            for x in fillers[:per]: A(x)
            fillers = fillers[per:]
    assert not fillers

def final(A):
    A(f"s_lshl_b32 {s(sT)}, {s(sW)}, 13")
    A(f"v_add_u32 {v(vEx)}, {s(sT)}, {v(vL16)}")
    A(f"s_xor_b32 {s(sT)}, {s(sT)}, 8192")
    A(f"v_add_u32 {v(T)}, {s(sT)}, {v(vL16)}")
    A("s_barrier")
    A(f"s_cmp_eq_u32 {s(sKH)}, 0")
    A("s_cbranch_scc1 L_f_kh0")
    for i in range(4): A(f"ds_write_b128 {v(vEx)}, {v(YA+4*i,4)} offset:{1024*i}")
    for i in range(4): A(f"ds_write_b128 {v(vEx)}, {v(EA+4*i,4)} offset:{4096+1024*i}")
    for i in range(16): A(f"v_mov_b32 {v(YA+i)}, {v(YA+16+i)}")
    for i in range(16): A(f"v_sub_f32 {v(EA+i)}, 0, {v(EA+i)}")
    A("s_branch L_f_join")
    A.label("L_f_kh0")
    A("s_nop 7")
    A("s_nop 3")
    for i in range(4): A(f"ds_write_b128 {v(vEx)}, {v(YA+16+4*i,4)} offset:{1024*i}")
    for i in range(4): A(f"ds_write_b128 {v(vEx)}, {v(EA+4*i,4)} offset:{4096+1024*i}")
    A.label("L_f_join")
    A("s_waitcnt lgkmcnt(0)")
    A("s_barrier")
    RY = 96; RE = 112
    for i in range(4): A(f"ds_read_b128 {v(RY+4*i,4)}, {v(T)} offset:{1024*i}")
    for i in range(4): A(f"ds_read_b128 {v(RE+4*i,4)}, {v(T)} offset:{4096+1024*i}")
    A(f"v_mov_b32 {v(T+2)}, {f32(-1.4426950408889634)}")
    A(f"v_mov_b32 {v(T+3)}, {f32(-1.4426950408889634)}")
    A(f"v_mov_b32 {v(T+4)}, {f32(2.0**19)}")
    A(f"v_mov_b32 {v(T+5)}, {f32(2.0**19)}")
    XF = 128
    for i in range(8):
        A(f"v_lshlrev_b32 {v(XF+2*i)}, 16, {v(XR+i)}")
        A(f"v_and_b32 {v(XF+2*i+1)}, 0xffff0000, {v(XR+i)}")
    A("s_waitcnt lgkmcnt(4)")
    for q in range(8): A(f"v_pk_add_f32 {v(YA+2*q,2)}, {v(YA+2*q,2)}, {v(RY+2*q,2)}")
    for q in range(8): A(f"v_pk_mul_f32 {v(RY+2*q,2)}, {v(YA+2*q,2)}, {v(T+2,2)}")
    for q in range(16): A(f"v_exp_f32 {v(RY+q)}, {v(RY+q)}")
    A("s_waitcnt lgkmcnt(0)")
    for q in range(8): A(f"v_pk_add_f32 {v(EA+2*q,2)}, {v(EA+2*q,2)}, {v(RE+2*q,2)}")
    for q in range(8): A(f"v_pk_fma_f32 {v(RY+2*q,2)}, {v(RY+2*q,2)}, {v(T+4,2)}, {v(T+4,2)}")
    for q in range(16): A(f"v_rcp_f32 {v(RY+q)}, {v(RY+q)}")
    for q in range(8): A(f"v_pk_mul_f32 {v(YA+2*q,2)}, {v(YA+2*q,2)}, {v(EA+2*q,2)}")
    for q in range(8): A(f"v_pk_fma_f32 {v(XF+2*q,2)}, {v(YA+2*q,2)}, {v(RY+2*q,2)}, {v(XF+2*q,2)}")
    for q in range(8): A(f"v_cvt_pk_bf16_f32 {v(XR+q)}, {v(XF+2*q)}, {v(XF+2*q+1)}")
    A(f"buffer_store_dwordx4 {v(XR,4)}, {v(vRow)}, {s(OS,4)}, 0 offen")
    A(f"buffer_store_dwordx4 {v(XR+4,4)}, {v(vRow)}, {s(OS,4)}, 0 offen offset:16")

def k3():
    A = Asm()
    A("s_cmp_ge_u32 s2, 256")
    A("s_cbranch_scc1 L_k3_end")
    A("s_load_dwordx2 s[4:5], s[0:1], 0")
    A("s_load_dwordx4 s[8:11], s[0:1], 48")
    A("s_load_dwordx2 s[6:7], s[0:1], 72")
    A("v_and_b32 v1, 63, v0")
    A("v_lshrrev_b32 v2, 6, v0")
    A(f"v_readfirstlane_b32 {s(sW)}, v2")
    wg_map_D(A)
    setup(A)
    setup2(A)
    A("s_waitcnt lgkmcnt(0)")
    srd(A, HSR, 6, WS_H, H_BYTES)
    srd(A, WDs, 8, 0, WG_BYTES)
    srd(A, XS, 4, 0, 0x200000)
    A(f"buffer_load_dwordx4 {v(XR,4)}, {v(vRow)}, {s(XS,4)}, 0 offen")
    A(f"buffer_load_dwordx4 {v(XR+4,4)}, {v(vRow)}, {s(XS,4)}, 0 offen offset:16")
    for t in range(PD):
        for g in loads(t):
            for x in g: A(x)
    srd(A, ZS, 6, WS_Z, 0x200000)
    srd(A, OS, 10, 0, 0x200000)
    main(A, fillers=idft_consts())
    final(A)
    A.label("L_k3_end")
    A("s_endpgm")
    return A.done()
```

```python
import sys
from common import *
import k0, k1, k2, k3
HEAD = open('recurrent_scan__spectral_gfnet__glu_gated_glu__prompt.s.ref').read().split('; Override')[0]
def build(kernels, path):
    o = HEAD
    for (n, l, vg, ac, g, b, lds) in kernels:
        o += f"; @launch kernel={n} grid=({g},1,1) block=({b},1,1) lds={lds}\n"
    o += '.amdgcn_target "amdgcn-amd-amdhsa--gfx950"\n'
    seen = set()
    for (n, l, vg, ac, g, b, lds) in kernels:
        if n in seen: continue
        seen.add(n); o += kernel_text(n, l, vg)
    o += '.section .rodata,"a"\n'
    seen = set()
    for (n, l, vg, ac, g, b, lds) in kernels:
        if n in seen: continue
        seen.add(n); o += kernel_desc(n, vg, 96, ac)
    open(path, 'w').write(o)
if __name__ == "__main__":
    ks = [("p0_kernel", k0.k0(), 136, 136, 256, 256, 34816),
          ("pb_kernel", k1.k1(), 256, 256, 256, 256, 163840),
          ("pc_kernel", k2.k2(), 168, 168, 256, 256, 16384),
          ("pd_kernel", k3.k3(), 256, 256, 256, 256, 131072)]
    build(ks, "t0.s")
```

```python
from gen import *
def empty():
    A = Asm(); A("s_endpgm"); return A.done()
K0 = ("p0_kernel", k0.k0(), 136, 136, 256, 256, 34816)
K1 = ("pb_kernel", k1.k1(), 256, 256, 256, 256, 163840)
K2 = ("pc_kernel", k2.k2(), 168, 168, 256, 256, 16384)
K3 = ("pd_kernel", k3.k3(), 256, 256, 256, 256, 131072)
E = ("e_kernel", empty(), 8, 8, 1, 64, 0)
build([K0, K1, K2, K3], "c_base.s")
build([K0, K1, K2, K3, E], "c_e1.s")
build([K0, K1, K2, K3, E, E, E, E], "c_e4.s")
build([E, K0, K1, K2, K3], "c_e0.s")
build([K0, K1, K2, K3, K3], "c_k3x2.s")
build([K0, K1, K1, K2, K3], "c_k1x2.s")
build([K0, K0, K1, K2, K3], "c_k0x2.s")
build([K0, K1, K2, K2, K3], "c_k2x2.s")
```

```python
from gen import *
def empty():
    A = Asm(); A("s_endpgm"); return A.done()
K0 = ("p0_kernel", k0.k0(), 136, 136, 256, 256, 34816)
K1 = ("pb_kernel", k1.k1(), 256, 256, 256, 256, 163840)
K2 = ("pc_kernel", k2.k2(), 168, 168, 256, 256, 16384)
K3 = ("pd_kernel", k3.k3(), 256, 256, 256, 256, 131072)
E = ("e_kernel", empty(), 8, 8, 1, 64, 0)
build([K0, K1, K2, K3], "c_base.s")
build([K0, K1, K2, K3, E], "c_e1.s")
build([K0, K1, K2, K3, E, E, E, E], "c_e4.s")
build([E, K0, K1, K2, K3], "c_e0.s")
build([K0, K1, K2, K3, K3], "c_k3x2.s")
build([K0, K1, K1, K2, K3], "c_k1x2.s")
build([K0, K0, K1, K2, K3], "c_k0x2.s")
build([K0, K1, K2, K2, K3], "c_k2x2.s")
def spin(n):
    A = Asm()
    A("s_mov_b32 s4, 0")
    A.label("L_spin")
    for i in range(16): A("v_add_f32 v1, v1, v1")
    A("s_add_u32 s4, s4, 1")
    A(f"s_cmp_lt_u32 s4, {n}")
    A("s_cbranch_scc1 L_spin")
    A("s_endpgm"); return A.done()
def touch():
    A = Asm()
    A("s_cmp_ge_u32 s2, 256")
    A("s_cbranch_scc1 L_t_end")
    A("s_load_dwordx4 s[4:7], s[0:1], 0")
    A("s_load_dwordx2 s[8:9], s[0:1], 16")
    A("s_load_dwordx4 s[12:15], s[0:1], 32")
    A("s_load_dwordx2 s[10:11], s[0:1], 48")
    A("s_lshl_b32 s3, s2, 13")
    A("v_lshlrev_b32 v1, 4, v0")
    A("v_add_u32 v1, s3, v1")
    A("s_waitcnt lgkmcnt(0)")
    for i, (b, sz) in enumerate([(4, 0x200000), (6, W_BYTES), (8, W_BYTES), (12, WG_BYTES), (14, WG_BYTES), (10, WG_BYTES)]):
        srd(A, 16, b, 0, sz)
        A(f"buffer_load_dwordx4 v[{4+8*i}:{7+8*i}], v1, s[16:19], 0 offen")
        A(f"s_mov_b32 s20, 4096")
        A(f"buffer_load_dwordx4 v[{8+8*i}:{11+8*i}], v1, s[16:19], s20 offen")
    A("s_waitcnt vmcnt(0)")
    A.label("L_t_end")
    A("s_endpgm"); return A.done()
SP = ("sp_kernel", spin(300), 8, 8, 256, 256, 0)
SP2 = ("sp_kernel", spin(600), 8, 8, 256, 256, 0)
TK = ("t_kernel", touch(), 64, 64, 256, 256, 0)
build([SP, K0, K1, K2, K3], "c_sp300.s")
build([SP2, K0, K1, K2, K3], "c_sp600.s")
build([TK, K0, K1, K2, K3], "c_touch.s")
build([K0, K1, K2, K3, K0, K1, K2, K3], "c_twice.s")
```
